```python
import torch

def _softmax(x, axis=-1):
    return torch.softmax(x, dim=axis)
def _gelu(x):
    return torch.nn.functional.gelu(x, approximate="tanh")
def _silu(x):
    return torch.nn.functional.silu(x)
def _sigmoid(x):
    return torch.sigmoid(x)
def _layernorm(x, axis=-1, eps=1e-5):
    m = x.mean(dim=axis, keepdim=True)
    v = x.var(dim=axis, keepdim=True, unbiased=False)
    return (x - m) / torch.sqrt(v + eps)
def _scatter_add(tgt, idx, src, axis=0):
    return tgt.clone().index_add_(axis, idx, src)
def _segment_sum(src, seg, n):
    out = torch.zeros((n,) + src.shape[1:], dtype=src.dtype)
    return out.index_add_(0, seg, src)
def _pad(x, pw):
    flat = tuple(v for pair in reversed(pw) for v in pair)
    return torch.nn.functional.pad(x, flat)

kernel_name = 'concat_heads__spectral_gfnet__mha_block__prompt'

def setup_inputs():

    _w = (lambda a: (lambda t: t.to(torch.bfloat16) if t.is_floating_point() else t)(torch.as_tensor(a)))
    def _A_setup():
        B, S, D = 1, 2048, 448
        Df = D // 2 + 1
        return {
            "x": _w((lambda *s: torch.randn(*s, dtype=torch.bfloat16) * 0.05)(B, S, D)),
            "w_r": _w((lambda *s: torch.randn(*s, dtype=torch.bfloat16) * 6.4)(S, Df) * 0.02),
            "w_i": _w((lambda *s: torch.randn(*s, dtype=torch.bfloat16) * 6.4)(S, Df) * 0.02),
        }
    _A_in = _A_setup()

    def _B_setup():
        B, S, D, H = 1, 2048, 448, 16
        return {
            "x": _w((lambda *s: torch.randn(*s, dtype=torch.bfloat16) * 0.2)(B, S, D)),
            "wqkv": _w((lambda *s: torch.randn(*s, dtype=torch.bfloat16) * 0.2)(D, 3 * D)),
            "wo": _w((lambda *s: torch.randn(*s, dtype=torch.bfloat16) * 0.05)(D, D)),
        }
    _B_in = _B_setup()

    return {
        "A_x": _A_in["x"],
        "A_w_r": _A_in["w_r"],
        "A_w_i": _A_in["w_i"],
        "B_x": _B_in["x"],
        "B_wqkv": _B_in["wqkv"],
        "B_wo": _B_in["wo"],
    }

def reference(A_x, A_w_r, A_w_i, B_x, B_wqkv, B_wo):
    def _A_ref(x, w_r, w_i):
        B, S, D = x.shape
        X = (lambda x, axes=(-2,-1): torch.fft.rfft2(x.float(), dim=axes))(x, axes=(-2, -1))
        W = w_r + 1j * w_i
        X = X * W
        y = (lambda x, s, axes=(-2,-1): torch.fft.irfft2(x, s=s, dim=axes).to(torch.bfloat16))(X, (S, D), axes=(-2, -1))
        return y

    def _B_ref(x, wqkv, wo):
        B, S, D = x.shape
        H = 16
        Dh = D // H
        qkv = (lambda x, *d: x.permute(*d))((x @ wqkv).reshape(B, S, 3, H, Dh), 2, 0, 3, 1, 4)
        q, k, v = qkv[0], qkv[1], qkv[2]
        scores = torch.einsum("bhqd,bhkd->bhqk", q, k) * (Dh ** -0.5)
        p = _softmax(scores, axis=-1)
        o = torch.einsum("bhqk,bhkd->bhqd", p, v)
        return (lambda x, *d: x.permute(*d))(o, 0, 2, 1, 3).reshape(B, S, D) @ wo

    a = _A_ref(A_x, A_w_r, A_w_i)
    b = _B_ref(B_x, B_wqkv, B_wo)
    return torch.concatenate([a, b], axis=-1)
```

```python
import re

TRANS = ("v_exp_", "v_log_", "v_rcp_", "v_rsq_", "v_sqrt_", "v_sin_", "v_cos_")

def parse_reg(tok):
    tok = tok.strip()
    tok = re.sub(r"^-", "", tok)
    m = re.match(r"^abs\((.*)\)$", tok)
    if m: tok = m.group(1)
    m = re.match(r"^\|(.*)\|$", tok)
    if m: tok = m.group(1)
    m = re.match(r"^([vsa])(\d+)$", tok)
    if m: return (m.group(1), int(m.group(2)), int(m.group(2)))
    m = re.match(r"^([vsa])\[(\d+):(\d+)\]$", tok)
    if m: return (m.group(1), int(m.group(2)), int(m.group(3)))
    if tok == "vcc": return ("s", 106, 107)
    if tok == "vcc_lo": return ("s", 106, 106)
    if tok == "vcc_hi": return ("s", 107, 107)
    if tok == "exec": return ("s", 126, 127)
    if tok == "m0": return ("s", 124, 124)
    return None

def regset(r):
    return {(r[0], i) for i in range(r[1], r[2] + 1)}

class Ins:
    def __init__(self, text):
        self.text = text
        t = text.split(";")[0].strip()
        self.label = None
        self.op = None
        if t.endswith(":"):
            self.label = t[:-1]; return
        if not t or t.startswith("."):
            return
        parts = t.split(None, 1)
        self.op = parts[0]
        rest = parts[1] if len(parts) > 1 else ""
        ops = [o.strip() for o in rest.split(",")] if rest else []
        self.mods = ""
        if ops:
            sp = ops[-1].split(None, 1)
            if len(sp) > 1 and not sp[0].endswith("("):
                ops[-1] = sp[0]; self.mods = sp[1]
        self.ops = ops
        self.analyze()

    def analyze(self):
        op = self.op; ops = self.ops
        R = [parse_reg(o) for o in ops]
        self.w = set(); self.r = set()
        self.cls = "other"; self.passes = 0
        self.mfma_c = set(); self.mfma_ab = set(); self.mfma_d = None; self.mfma_cr = None
        self.store_data = set()
        self.nops = 1
        def S(i): return regset(R[i]) if i < len(R) and R[i] else set()
        if op == "s_nop":
            self.cls = "nop"; self.nops = int(ops[0], 0) + 1
        elif op.startswith("v_mfma"):
            self.cls = "mfma"
            self.passes = 8 if "32x32" in op else 4
            if op.endswith("_f32") and ("32x32x2" in op): self.passes = 16
            self.w = S(0); self.mfma_d = R[0]
            self.mfma_ab = S(1) | S(2); self.mfma_c = S(3); self.mfma_cr = R[3]
            self.r = self.mfma_ab | self.mfma_c
        elif op.startswith("v_cmp"):
            self.cls = "valu"; self.w = S(0); self.r = S(1) | S(2)
            if op.startswith("v_cmpx"): self.w |= regset(("s", 126, 127))
        elif op.startswith("v_readfirstlane") or op.startswith("v_readlane"):
            self.cls = "valu"; self.w = S(0); self.r = S(1) | S(2); self.readlane = True
        elif op.startswith("v_permlane") :
            self.cls = "valu"; self.w = S(0) | S(1); self.r = S(0) | S(1); self.perml = True
        elif op.startswith("v_"):
            self.cls = "valu"
            self.w = S(0)
            start = 1
            if re.match(r"v_(add|sub|subrev|addc|subb)_co_", op) or op.startswith("v_div_scale") or op.startswith("v_mad_u64"):
                self.w |= S(1); start = 2
            for i in range(start, len(R)): self.r |= S(i)
            if op.startswith("v_fmac") or op.startswith("v_writelane") or "UNUSED_PRESERVE" in self.mods or op.startswith("v_pk_fmac") or op.startswith("v_dot2c"):
                self.r |= S(0)
            if op.startswith("v_cndmask") and len(ops) == 3: self.r |= regset(("s", 106, 107))
        elif op.startswith("buffer_") or op.startswith("global_"):
            self.cls = "vmem"
            lds = re.search(r"\blds\b", self.mods) is not None or "_lds_" in op
            self.lds_dma = lds
            if op.startswith("buffer_"):
                if op in ("buffer_wbl2", "buffer_inv"):
                    pass
                elif lds:
                    for i in range(len(R)): self.r |= S(i)
                    self.r |= regset(("s", 124, 124))
                elif "load" in op:
                    self.w = S(0)
                    if "d16" in op: self.r |= S(0)
                    for i in range(1, len(R)): self.r |= S(i)
                else:
                    for i in range(len(R)): self.r |= S(i)
                    if "x3" in op or "x4" in op: self.store_data = S(0)
                    if "atomic" in op and "sc0" in self.mods: self.w = S(0)
            else:
                if lds:
                    for i in range(len(R)): self.r |= S(i)
                    self.r |= regset(("s", 124, 124))
                elif "load" in op:
                    self.w = S(0)
                    for i in range(1, len(R)): self.r |= S(i)
                else:
                    for i in range(len(R)): self.r |= S(i)
                    if "x3" in op or "x4" in op: self.store_data = S(1)
        elif op.startswith("ds_"):
            self.cls = "ds"
            if op.startswith("ds_read") or op.startswith("ds_bpermute") or op.startswith("ds_permute") or op.startswith("ds_swizzle") or "_rtn_" in op:
                self.w = S(0)
                if "d16" in op: self.r |= S(0)
                for i in range(1, len(R)): self.r |= S(i)
            else:
                for i in range(len(R)): self.r |= S(i)
        elif op.startswith("s_"):
            self.cls = "salu"
            if op.startswith("s_cmp") or op.startswith("s_cbranch") or op.startswith("s_branch") or op in ("s_waitcnt", "s_barrier", "s_endpgm", "s_sleep", "s_setprio"):
                for i in range(len(R)): self.r |= S(i)
            else:
                self.w = S(0)
                for i in range(1, len(R)): self.r |= S(i)
                if "saveexec" in op: self.w |= regset(("s", 126, 127))
        self.trans = any(op.startswith(t) for t in TRANS)
        self.sdwa = "_sdwa" in op or "op_sel" in self.mods
        self.dpp = "_dpp" in op or "row_" in self.mods or "quad_perm" in self.mods

def need(p, c):
    n = 0
    pv = {x for x in p.w if x[0] in "va"}
    ps = {x for x in p.w if x[0] == "s"}
    if p.cls == "valu":
        if c.cls == "mfma" and pv & c.r: n = max(n, 2)
        if c.cls == "valu":
            if p.trans and not c.trans and pv & c.r: n = max(n, 1)
            if p.trans and c.trans and pv & c.r: n = max(n, 1)
            if getattr(c, "readlane", False) and pv & c.r: n = max(n, 1)
            if getattr(c, "perml", False) and pv & c.r: n = max(n, 2)
            if c.dpp and pv & c.r: n = max(n, 2)
            if p.sdwa and pv & (c.r | c.w): n = max(n, 1)
            if ps & c.r:
                n = max(n, 4 if (getattr(c, "readlane", False) or c.op.startswith("v_writelane")) else 2)
        if c.cls == "vmem" and ps & c.r: n = max(n, 5)
        if c.cls == "ds" and p.trans and pv & c.r: n = max(n, 1)
        if c.cls == "vmem" and p.trans and pv & c.r: n = max(n, 1)
        if c.cls == "mfma" and ("s", 126) in ps: n = max(n, 4)
        if c.cls == "salu" and ps & c.r and not c.op.startswith("s_cbranch"): n = max(n, 1)
    if p.cls == "mfma":
        big = {2: 5, 4: 8, 8: 12, 16: 20}[p.passes]
        if c.cls in ("valu", "vmem", "ds") and pv & (c.r | c.w): n = max(n, big)
        if c.cls == "mfma":
            if pv & c.mfma_ab: n = max(n, big)
            if pv & c.mfma_c:
                if c.mfma_cr == p.mfma_d and c.passes == p.passes: n = max(n, 2 if p.passes == 2 else 0)
                else: n = max(n, {2: 4, 4: 6, 8: 10, 16: 18}[p.passes])
            elif pv & c.w:
                n = max(n, {2: 4, 4: 6, 8: 10, 16: 18}[p.passes])
        if c.cls in ("valu",) and p.mfma_c & c.w: n = max(n, {2: 1, 4: 3, 8: 7, 16: 15}[p.passes])
        if c.cls in ("vmem", "ds") and p.mfma_c & c.w: n = max(n, {2: 1, 4: 3, 8: 7, 16: 15}[p.passes])
    if p.cls == "salu" and ("s", 124) in ps and c.cls == "vmem" and getattr(c, "lds_dma", False): n = max(n, 1)
    if p.cls == "vmem" and p.store_data and p.store_data & c.w:
        n = max(n, 2 if c.cls in ("valu", "mfma") else 1)
    return n

class Asm:
    def __init__(self):
        self.lines = []
        self.uid = 0
    def __call__(self, s):
        for l in s.split("\n"):
            l = l.strip()
            if l: self.lines.append(l)
    def label(self, l): self.lines.append(l + ":")
    def newlabel(self, base="L"):
        self.uid += 1
        return f"{base}_{self.uid}"
    def comment(self, s): self.lines.append("; " + s)

    def finalize(self, verbose=False):
        W = 24
        ins = [Ins(l) for l in self.lines]
        inserted = 0
        def real(seq): return [x for x in seq if x.op]
        def scan(hist, seq_start, ins, limit):
            h = list(hist[-W:])
            nh = len(h)
            dist_acc = 0
            k = seq_start
            while k < len(ins) and dist_acc < limit:
                c = ins[k]
                if c.op:
                    d = 0
                    worst = 0
                    for p in reversed(h):
                        nn = need(p, c)
                        if nn > d: worst = max(worst, nn - d)
                        d += p.nops
                        if d > W: break
                    if worst > 0: return k, worst
                    h.append(c); dist_acc += c.nops
                    if c.op in ("s_branch", "s_endpgm", "s_setpc_b64"): break
                k += 1
            return None
        changed = True
        while changed:
            changed = False
            k = 0; hist = []
            while k < len(ins):
                c = ins[k]
                if c.op:
                    d = 0; worst = 0
                    for p in reversed(hist[-W:]):
                        nn = need(p, c)
                        if nn > d: worst = max(worst, nn - d)
                        d += p.nops
                        if d > W: break
                    if worst > 0:
                        n = worst
                        while n > 0:
                            m = min(n, 16)
                            x = Ins(f"s_nop {m-1}")
                            ins.insert(k, x); hist.append(x); k += 1; n -= m; inserted += 1
                    hist.append(c)
                    if c.op in ("s_branch", "s_endpgm", "s_setpc_b64"): hist = []
                k += 1
            labels = {x.label: i for i, x in enumerate(ins) if x.label}
            for i, x in enumerate(ins):
                if x.op and (x.op.startswith("s_cbranch") or x.op == "s_branch"):
                    t = labels.get(x.ops[0])
                    if t is None: continue
                    hist = real(ins[max(0, i - 3 * W):i + 1])
                    for j in range(len(hist) - 2, -1, -1):
                        if hist[j].op in ("s_branch", "s_endpgm"):
                            hist = hist[j + 1:]; break
                    v = scan(hist, t + 1, ins, W)
                    if v:
                        k, n = v
                        while n > 0:
                            m = min(n, 16)
                            ins.insert(k, Ins(f"s_nop {m-1}")); n -= m; inserted += 1
                        changed = True
                        break
        if verbose: print("hazard nops inserted:", inserted)
        out = []
        for x in ins:
            if x.label or x.text.startswith(".") or x.text.startswith(";"): out.append(x.text)
            else: out.append("    " + x.text)
        return "\n".join(out)

def vr(b, n=1):
    return f"v{b}" if n == 1 else f"v[{b}:{b+n-1}]"
def sr(b, n=1):
    return f"s{b}" if n == 1 else f"s[{b}:{b+n-1}]"
```

```python
import sys, struct, math
sys.path.insert(0, "dev")
from asmlib import *

KN = "concat_heads__spectral_gfnet__mha_block__prompt_kernel"
WS_KV = 0
WS_OF = 4 << 20
WS_X1 = 6 << 20
WS_WT = 8 << 20
WS_Z = 10 << 20
WS_F1 = 12 << 20
WS_F4 = WS_F1 + 4096
WS_F2 = WS_F4 + 8192
WS_F3 = WS_F2 + 1024
WS_PROF = 13 << 20
WS_SIZE = 16 << 20
S_WS, S_AX, S_WR, S_WI, S_BX, S_WQ, S_WO, S_OUT, S_DBG = 4, 8, 12, 16, 20, 24, 28, 32, 36
SW = 3
sRB, sHD, sQT, sKH, sOC = 40, 41, 42, 43, 44
sA2C, sA2S, sA2P = 45, 46, 47
sQ32, sCG4 = 48, 49
def f32(x): return "0x%08x" % struct.unpack("<I", struct.pack("<f", x))[0]
QSCALE = math.log2(math.e) / math.sqrt(28.0)
M16 = "v_mfma_f32_16x16x32_bf16"
M32 = "v_mfma_f32_32x32x16_bf16"
OOB = "0x40000000"
def srd(s): return f"s[{s}:{s+3}]"

class Cfg:
    prof = False
    in_mod = ""
    st = "sc1"
    ld = "sc1"
    a2_stage = 3
    wo_stage = 9
    a3_stage = 11
    spin = 1 << 16
cfg = Cfg()

def stamp(a, i, real=False):
    if not cfg.prof: return
    a(f"s_mem{'real' if real else ''}time s[100:101]")
    a("s_waitcnt lgkmcnt(0)")
    a(f"s_mov_b32 s{84+i}, s100")
NST = 16
def stamp_flush(a):
    if not cfg.prof: return
    stamp(a, 14); stamp(a, 15, True)
    a("s_lshl_b32 s100, s2, 3")
    a(f"s_add_u32 s100, s100, s{SW}")
    a("s_lshl_b32 s100, s100, 6")
    a(f"s_add_u32 s100, s100, {WS_PROF}")
    a("v_mov_b32 v1, 0")
    for i in range(NST):
        a(f"v_mov_b32 v2, s{84+i}")
        a(f"buffer_store_dword v2, v1, {srd(S_WS)}, s100 offen offset:{4*i}")
def stamp_init(a):
    if not cfg.prof: return
    for i in range(NST): a(f"s_mov_b32 s{84+i}, 0")
    stamp(a, 0); stamp(a, 1, True)

B1_SLOT, B1_NSLOT = 28672, 5
A1_LDS, A1_WSTRIDE = 143360, 8208
B1_MAP = [3, 4, 0, 1, 2, 3, 4]
WT_LDS = 0
AT_SLOT, AT_R = 16384, 4
Q_LDS = 65536
A2_X = 73728
B3_WO = 63488
B3_O = 0
A3_L = 49152

def prologue(a, end_label):
    a("s_cmp_ge_u32 s2, 256")
    a(f"s_cbranch_scc1 {end_label}")
    a("s_load_dwordx16 s[40:55], s[0:1], 0")
    a("s_load_dwordx2 s[56:57], s[0:1], 64")
    a("v_lshrrev_b32 v1, 6, v0")
    a("v_and_b32 v0, 63, v0")
    a(f"v_readfirstlane_b32 s{SW}, v1")
    a("s_waitcnt lgkmcnt(0)")
    sizes = {S_AX: (40, 2048 * 896), S_WR: (42, 2048 * 450), S_WI: (44, 2048 * 450), S_BX: (46, 2048 * 896),
             S_WQ: (48, 448 * 2688), S_WO: (50, 448 * 896), S_OUT: (52, 2048 * 1792), S_DBG: (54, 256), S_WS: (56, WS_SIZE)}
    for s_, (p, n) in sizes.items():
        a(f"s_mov_b32 s{s_}, s{p}")
        a(f"s_and_b32 s{s_+1}, s{p+1}, 0xffff")
        a(f"s_mov_b32 s{s_+2}, {n}")
        a(f"s_mov_b32 s{s_+3}, 0x00020000")
    a("s_and_b32 s60, s2, 7")
    a("s_lshr_b32 s61, s2, 3")
    a(f"s_lshr_b32 s{sRB}, s60, 1")
    a(f"s_lshl_b32 s{sRB}, s{sRB}, 2")
    a("s_lshr_b32 s62, s61, 3")
    a(f"s_add_u32 s{sRB}, s{sRB}, s62")
    a(f"s_and_b32 s{sHD}, s60, 1")
    a(f"s_lshl_b32 s{sHD}, s{sHD}, 3")
    a("s_and_b32 s62, s61, 7")
    a(f"s_add_u32 s{sHD}, s{sHD}, s62")
    a(f"s_and_b32 s{sQT}, s{SW}, 3")
    a(f"s_lshr_b32 s{sKH}, s{SW}, 2")
    a(f"s_lshl_b32 s{sOC}, s60, 5")
    a(f"s_add_u32 s{sOC}, s{sOC}, s61")
    a(f"s_lshl_b32 s{sQ32}, s60, 3")
    a("s_lshr_b32 s62, s61, 2")
    a(f"s_add_u32 s{sQ32}, s{sQ32}, s62")
    a(f"s_and_b32 s{sCG4}, s61, 3")

def flag_reset(a):
    a(f"s_lshl_b32 s60, s{sHD}, 8")
    a(f"s_lshl_b32 s61, s{sRB}, 4")
    a("s_add_u32 s60, s60, s61")
    a(f"s_add_u32 s60, s60, {WS_F1}")
    a("v_lshl_add_u32 v2, v0, 2, s60")
    a("v_subrev_u32 v3, 4, v0")
    a("v_and_b32 v4, 3, v3")
    a("v_lshlrev_b32 v4, 7, v4")
    a("v_lshrrev_b32 v3, 2, v3")
    a("v_lshl_add_u32 v4, v3, 2, v4")
    a(f"s_lshl_b32 s60, s{sRB}, 9")
    a(f"s_lshl_b32 s61, s{sHD}, 3")
    a("s_add_u32 s60, s60, s61")
    a(f"s_add_u32 s60, s60, {WS_F4}")
    a("v_add_u32 v4, s60, v4")
    a("v_cmp_gt_u32 vcc, 4, v0")
    a("v_cndmask_b32 v2, v4, v2, vcc")
    a("s_lshl_b32 s60, s2, 2")
    a(f"s_add_u32 s60, s60, {WS_F2}")
    a("v_mov_b32 v4, s60")
    a("v_cmp_eq_u32 vcc, 12, v0")
    a("v_cndmask_b32 v2, v2, v4, vcc")
    a("v_add_u32 v4, 0x400, v4")
    a("v_cmp_eq_u32 vcc, 13, v0")
    a("v_cndmask_b32 v2, v2, v4, vcc")
    a("v_mov_b32 v3, 0")
    a("s_mov_b64 exec, 0x3fff")
    a(f"buffer_store_dword v3, v2, {srd(S_WS)}, 0 offen sc1")
    a("s_mov_b64 exec, -1")

def flag_reset_done(a):
    a("s_waitcnt vmcnt(0)")
    a("v_mov_b32 v2, s2")
    a("v_mov_b32 v3, 1")
    a("s_mov_b64 exec, 1")
    a(f"buffer_store_byte v3, v2, {srd(S_DBG)}, 0 offen sc1")
    a("s_mov_b64 exec, -1")

def signal(a, soff):
    a("v_mov_b32 v2, 0")
    a("v_mov_b32 v3, 1")
    a("s_mov_b64 exec, 1")
    a(f"buffer_store_dword v3, v2, {srd(S_WS)}, {soff} offen sc1")
    a("s_mov_b64 exec, -1")

def poll(a, kind, soff=None, nlanes=64, name="P"):
    lp = a.newlabel(name)
    if kind == "x4": a("v_lshlrev_b32 v2, 4, v0")
    else: a("v_lshlrev_b32 v2, 2, v0")
    if nlanes == 32: a("s_mov_b32 exec_hi, 0")
    a(f"s_mov_b32 s62, {cfg.spin}")
    a.label(lp)
    if kind == "dw":
        a(f"buffer_load_dword v3, v2, {srd(S_WS)}, {soff} offen sc1")
        a("s_waitcnt vmcnt(0)")
        a("v_cmp_ne_u32 vcc, 1, v3")
    elif kind == "x4":
        a(f"buffer_load_dwordx4 v[4:7], v2, {srd(S_WS)}, {soff} offen sc1")
        a("s_waitcnt vmcnt(0)")
        a("v_and_b32 v4, v4, v5")
        a("v_and_b32 v6, v6, v7")
        a("v_and_b32 v4, v4, v6")
        a("v_cmp_ne_u32 vcc, 1, v4")
    else:
        a(f"buffer_load_dword v3, v2, {srd(S_DBG)}, 0 offen sc1")
        a("s_waitcnt vmcnt(0)")
        a("v_cmp_ne_u32 vcc, 0x01010101, v3")
    a("s_sub_u32 s62, s62, 1")
    a("s_cselect_b64 vcc, 0, vcc")
    a(f"s_cbranch_vccnz {lp}")
    if nlanes == 32: a("s_mov_b64 exec, -1")

def b1_loader_setup(a):
    a(f"s_sub_u32 s65, s{SW}, 4")
    a("v_lshrrev_b32 v7, 3, v0")
    a("v_mul_u32_u24 v8, 0x380, v7")
    a("v_and_b32 v9, 7, v0")
    a("v_lshrrev_b32 v10, 4, v0")
    a("v_xor_b32 v11, v9, v10")
    a("v_lshl_add_u32 v12, v11, 4, v8")
    a("v_xor_b32 v11, 4, v11")
    a("v_lshl_add_u32 v13, v11, 4, v8")
    a("s_mov_b32 s66, 43691")
    a("s_movk_i32 s67, 2688")
    for i3 in range(3):
        a(f"v_add_u32 v7, {64*i3}, v0")
        a("v_mul_lo_u32 v8, v7, s66")
        a("v_lshrrev_b32 v8, 19, v8")
        a("v_mul_u32_u24 v9, 12, v8")
        a("v_sub_u32 v9, v7, v9")
        a("v_mul_lo_u32 v8, v8, s67")
        a("v_lshrrev_b32 v10, 2, v9")
        a("v_mul_u32_u24 v10, 0x380, v10")
        a("v_and_b32 v9, 3, v9")
        a("v_lshl_add_u32 v9, v9, 4, v10")
        a(f"v_add_u32 v{14+i3}, v9, v8")
    a(f"s_lshl_b32 s66, s{sRB}, 7")
    a("s_lshl_b32 s67, s65, 5")
    a("s_add_u32 s66, s66, s67")
    a("s_mul_i32 s66, s66, 896")
    a("s_mul_i32 s67, s65, 43008")
    a(f"s_mul_i32 s68, s{sHD}, 56")
    a("s_add_u32 s67, s67, s68")
    a("s_lshl_b32 s68, s65, 12")
    a("s_mul_i32 s69, s65, 3072")
    a("s_bfe_u32 s70, s2, 0x30003")
    a("s_lshr_b32 s71, s2, 6")
    a("s_lshl_b32 s71, s71, 1")
    a("s_add_u32 s70, s70, s71")
    a("s_sub_u32 s71, s70, 7")
    a("s_min_u32 s70, s70, s71")
    a("s_lshl_b32 s71, s70, 7")
    a("s_add_u32 s66, s66, s71")
    a("s_mul_i32 s71, s70, 172032")
    a("s_add_u32 s67, s67, s71")

def b1_issue(a, c):
    lb = B1_MAP[c] * B1_SLOT
    for i in range(4):
        a(f"s_add_u32 m0, s68, {lb + i*1024}")
        a(f"s_add_u32 s72, s66, {i*7168}")
        a(f"buffer_load_dwordx4 v{12 + (i & 1)}, {srd(S_BX)}, s72 offen {cfg.in_mod} lds")
    for i3 in range(3):
        a(f"s_add_u32 m0, s69, {lb + 16384 + i3*1024}")
        a(f"buffer_load_dwordx4 v{14+i3}, {srd(S_WQ)}, s67 offen {cfg.in_mod} lds")
    a("s_add_u32 s70, s70, 1")
    a("s_cmp_eq_u32 s70, 7")
    a("s_cselect_b32 s70, 0, s70")
    a("s_cselect_b32 s71, -6, 1")
    a("s_lshl_b32 s72, s71, 7")
    a("s_add_u32 s66, s66, s72")
    a("s_mul_i32 s72, s71, 172032")
    a("s_add_u32 s67, s67, s72")

ACC, FB = 64, 112
def b1_compute(a):
    XA, WA, XB, WB = 20, 24, 26, 30
    a("v_and_b32 v5, 31, v0")
    a("v_lshrrev_b32 v6, 5, v0")
    a("v_bfe_u32 v7, v5, 1, 3")
    a(f"s_lshl_b32 s65, s{SW}, 12")
    a("v_lshlrev_b32 v8, 7, v5")
    a("v_add_u32 v8, s65, v8")
    for ks in range(4):
        a(f"v_add_u32 v9, {2*ks}, v6")
        a("v_xor_b32 v9, v9, v7")
        a(f"v_lshl_add_u32 v{XB+ks}, v9, 4, v8")
    a("v_bfe_u32 v9, v0, 2, 2")
    a("v_lshl_add_u32 v9, v6, 3, v9")
    a("v_mul_u32_u24 v9, 0xc0, v9")
    a("v_bfe_u32 v10, v0, 4, 1")
    a("v_lshlrev_b32 v10, 5, v10")
    a("v_and_b32 v11, 3, v0")
    a("v_lshl_add_u32 v10, v11, 3, v10")
    a(f"v_add_u32 v{WB}, v9, v10")
    a(f"v_add_u32 v{WB}, 0x4000, v{WB}")
    for i in range(48): a(f"v_mov_b32 v{ACC+i}, 0")
    def reads(ks, F):
        a(f"ds_read_b128 {vr(F,4)}, v{XA+ks}")
        for i in range(3):
            for e in range(2):
                a(f"ds_read_b64_tr_b16 {vr(F+4+4*i+2*e,2)}, v{WA} offset:{(16*ks+4*e)*192 + 64*i}")
    def setaddr(lb):
        for ks in range(4): a(f"v_add_u32 v{XA+ks}, {lb}, v{XB+ks}")
        a(f"v_add_u32 v{WA}, {lb}, v{WB}")
    def mm(F):
        X = vr(F, 4)
        for i in range(3):
            Wf = vr(F + 4 + 4 * i, 4); D = vr(ACC + 16 * i, 16)
            if i < 2: a(f"{M32} {D}, {Wf}, {X}, {D}")
            else: a(f"{M32} {D}, {X}, {Wf}, {D}")
    g = 0
    for c in range(7):
        setaddr(B1_MAP[c] * B1_SLOT)
        a("s_barrier")
        if c == 0: stamp(a, 3)
        Fs = [FB + 16 * ((g + k) % 3) for k in range(4)]
        reads(0, Fs[0]); reads(1, Fs[1])
        a("s_waitcnt lgkmcnt(7)"); mm(Fs[0]) if False else None
        reads(2, Fs[2])
        mm(Fs[0])
        a("s_waitcnt lgkmcnt(7)")
        mm(Fs[1])
        reads(3, Fs[3])
        a("s_waitcnt lgkmcnt(7)")
        mm(Fs[2])
        a("s_waitcnt lgkmcnt(0)")
        mm(Fs[3])
        g += 4
    stamp(a, 4)

Qr, Or, S0, S1, Pr, Kf, Vf = 16, 24, 40, 56, 72, 80, 88
VCUR, VNXT, VL16 = 12, 13, 14
OWN_SLOT = 3

def b1_epilogue(a):
    O = FB
    a("v_cmp_gt_u32 s[76:77], 32, v0")
    a("v_cmp_gt_u32 vcc, 28, v5")
    a("v_cndmask_b32 v9, 0, -1, vcc")
    a("v_cmp_eq_u32 vcc, 28, v5")
    a("v_mov_b32 v11, 0x3f803f80")
    a("v_cndmask_b32 v10, 0, v11, vcc")
    a(f"v_lshlrev_b32 v{VL16}, 4, v0")
    a(f"s_lshl_b32 s70, s{sHD}, 6")
    a(f"s_lshl_b32 s71, s{sRB}, 2")
    a("s_add_u32 s70, s70, s71")
    a(f"s_add_u32 s70, s70, s{SW}")
    a("s_lshl_b32 s70, s70, 12")
    if WS_KV: a(f"s_add_u32 s70, s70, {WS_KV}")
    a(f"s_lshl_b32 s71, s{SW}, 12")
    a(f"s_add_u32 s71, s71, {OWN_SLOT*AT_SLOT}")
    a(f"v_add_u32 v8, s71, v{VL16}")
    D = ACC + 16
    for r in range(8): a(f"v_cvt_pk_bf16_f32 v{O+r}, v{D+2*r}, v{D+2*r+1}")
    a(f"v_cndmask_b32 v{O+6}, v11, v{O+6}, s[76:77]")
    a(f"v_cndmask_b32 v{O+7}, v11, v{O+7}, s[76:77]")
    a(f"buffer_store_dwordx4 {vr(O,4)}, v{VL16}, {srd(S_WS)}, s70 offen {cfg.st}")
    a(f"buffer_store_dwordx4 {vr(O+4,4)}, v{VL16}, {srd(S_WS)}, s70 offen offset:1024 {cfg.st}")
    D = ACC + 32
    for r in range(8): a(f"v_cvt_pk_bf16_f32 v{O+8+r}, v{D+2*r}, v{D+2*r+1}")
    for r in range(8): a(f"v_and_or_b32 v{O+8+r}, v{O+8+r}, v9, v10")
    a(f"buffer_store_dwordx4 {vr(O+8,4)}, v{VL16}, {srd(S_WS)}, s70 offen offset:2048 {cfg.st}")
    a(f"buffer_store_dwordx4 {vr(O+12,4)}, v{VL16}, {srd(S_WS)}, s70 offen offset:3072 {cfg.st}")
    a(f"s_mov_b32 s72, {f32(QSCALE)}")
    D = ACC
    for r in range(16): a(f"v_mul_f32 v{D+r}, s72, v{D+r}")
    for r in range(8): a(f"v_cvt_pk_bf16_f32 v{Qr+r}, v{D+2*r}, v{D+2*r+1}")
    a(f"v_cndmask_b32 v{Qr+6}, 0, v{Qr+6}, s[76:77]")
    a(f"v_cndmask_b32 v{Qr+7}, 0, v{Qr+7}, s[76:77]")
    for q in range(4):
        a(f"ds_write_b128 v8, {vr(O+4*q,4)} offset:{q*1024}")
    a(f"s_lshl_b32 s71, s{SW}, 11")
    a(f"s_add_u32 s71, s71, {Q_LDS}")
    a(f"v_add_u32 v8, s71, v{VL16}")
    a(f"ds_write_b128 v8, {vr(Qr,4)}")
    a(f"ds_write_b128 v8, {vr(Qr+4,4)} offset:1024")

CB0, CB1, G1 = 160, 176, 192
def a1_dma(a):
    a("v_mul_u32_u24 v2, 57, v0")
    a("v_lshrrev_b32 v2, 9, v2")
    a("v_sub_u32 v2, v0, v2")
    a("v_subrev_u32 v3, 56, v2")
    a("v_min_u32 v2, v2, v3")
    a("v_lshlrev_b32 v2, 4, v2")
    a("v_add_u32 v4, 64, v0")
    a("v_mul_u32_u24 v3, 57, v4")
    a("v_lshrrev_b32 v3, 9, v3")
    a("v_sub_u32 v3, v4, v3")
    a("v_subrev_u32 v4, 56, v3")
    a("v_min_u32 v3, v3, v4")
    a("v_subrev_u32 v4, 56, v3")
    a("v_min_u32 v3, v3, v4")
    a("v_lshlrev_b32 v3, 4, v3")
    a(f"s_and_b32 s75, s{SW}, 1")
    a(f"s_lshr_b32 s72, s{sOC}, 4")
    a("s_lshl_b32 s72, s72, 7")
    a(f"s_and_b32 s73, s{sOC}, 15")
    a("s_lshl_b32 s73, s73, 1")
    a("s_add_u32 s72, s72, s73")
    a("s_add_u32 s72, s72, s75")
    a("s_mul_i32 s72, s72, 896")
    a(f"s_mul_i32 s73, s75, {A1_WSTRIDE}")
    a(f"s_add_u32 s73, s73, {A1_LDS}")
    for r in range(4):
        a(f"s_add_u32 s74, s72, {r*32*896}")
        a(f"s_add_u32 m0, s73, {r*2052}")
        a(f"buffer_load_dwordx4 v2, {srd(S_AX)}, s74 offen {cfg.in_mod} lds")
        a(f"s_add_u32 m0, s73, {r*2052 + 1024}")
        a(f"buffer_load_dwordx4 v3, {srd(S_AX)}, s74 offen {cfg.in_mod} lds")

def a1_consts(a, piece):
    if piece == 0:
        a("v_and_b32 v25, 31, v0")
        a("v_lshrrev_b32 v26, 5, v0")
        a("v_cvt_f32_u32 v27, v25")
        a(f"v_mul_f32 v27, {f32(1/64)}, v27")
        a("v_cvt_f32_u32 v28, v26")
        a("v_mul_f32 v29, v27, v28")
        a("v_add_f32 v27, v27, v27")
        a("v_cmp_eq_u32 s[76:77], 0, v25")
        a("v_mov_b32 v30, 0x3f803f80")
        a("v_lshlrev_b32 v31, 15, v26")
        a("v_lshl_or_b32 v31, v26, 31, v31")
        a("v_or_b32 v30, v30, v31")
    if piece < 4:
        t = piece
        for jj in range(4):
            a("v_cos_f32 v32, v29")
            a("v_sin_f32 v33, v29")
            a("v_add_f32 v29, v29, v27")
            a("v_cos_f32 v34, v29")
            a("v_sin_f32 v35, v29")
            a("v_add_f32 v29, v29, v27")
            a(f"v_cvt_pk_bf16_f32 v{CB0+4*t+jj}, v32, v34")
            a("v_cvt_pk_bf16_f32 v36, -v33, -v35")
            a(f"v_cndmask_b32 v{CB1+4*t+jj}, v36, v30, s[76:77]")
        return
    a("v_bfe_u32 v32, v25, 2, 1")
    a("v_bfe_u32 v33, v25, 3, 1")
    a("v_bfe_u32 v34, v25, 1, 1")
    a("v_lshl_add_u32 v34, v33, 1, v34")
    a("v_lshl_add_u32 v35, v32, 2, v34")
    a("v_cmp_gt_u32 s[78:79], 16, v25")
    a("v_cndmask_b32 v36, v34, v35, s[78:79]")
    a("v_cvt_f32_u32 v36, v36")
    a(f"v_mul_f32 v36, {f32(1/7)}, v36")
    a("v_and_b32 v37, 1, v25")
    a("v_cvt_f32_u32 v37, v37")
    a("v_mul_f32 v37, 0x3e800000, v37")
    a("v_mul_f32 v38, 4.0, v28")
    a("v_fma_f32 v37, v38, v36, v37")
    a("v_cmp_gt_u32 vcc, 7, v35")
    a("s_and_b64 s[80:81], vcc, s[78:79]")
    a("v_cmp_eq_u32 vcc, 0, v32")
    a("s_andn2_b64 s[82:83], vcc, s[78:79]")
    a("s_or_b64 s[82:83], s[82:83], s[80:81]")
    a("v_cmp_eq_u32 vcc, 1, v32")
    a("s_andn2_b64 s[58:59], vcc, s[78:79]")
    for i in range(4):
        a("v_cos_f32 v32, v37")
        a("v_sin_f32 v33, v37")
        a("v_add_f32 v37, v37, v36")
        a("v_cndmask_b32 v34, 0, v32, s[82:83]")
        a("v_cndmask_b32 v35, 0, v33, s[80:81]")
        a("v_cndmask_b32 v35, v35, v32, s[58:59]")
        a(f"v_cvt_pk_bf16_f32 v{G1+i}, v34, v35")
    a("v_cmp_gt_u32 vcc, 32, v0")
    a(f"v_cndmask_b32 v{G1+3}, 0, v{G1+3}, vcc")
    a("v_lshrrev_b32 v32, 3, v25")
    a("v_mul_u32_u24 v32, 0x804, v32")
    a("v_and_b32 v33, 7, v25")
    a("v_mul_u32_u24 v33, 0x90, v33")
    a("v_mul_u32_u24 v34, 14, v26")
    a("v_add3_u32 v32, v32, v33, v34")
    a("v_add_u32 v40, s73, v32")
    a("v_lshl_add_u32 v33, v26, 7, v25")
    a("v_lshlrev_b32 v33, 4, v33")
    a("s_lshl_b32 s74, s75, 12")
    a("v_add_u32 v41, s74, v33")

def a1_compute(a):
    TMP, AOP, D0, D1, P, DB, OUT = 64, 96, 112, 128, 144, 64, 128
    a(f"s_lshl_b32 s74, s{sOC}, 13")
    a(f"s_add_u32 s74, s74, {WS_X1}")
    for t in range(4):
        for j in range(8):
            bp = 8 * t + j
            a(f"ds_read_u16 v{TMP+8*t+j}, v40 offset:{28*bp + 16*((14*bp) >> 6)}")
    for t in range(4):
        a(f"s_waitcnt lgkmcnt({min(15, 8*(3-t))})")
        for jj in range(4):
            a(f"v_lshl_or_b32 v{AOP+4*t+jj}, v{TMP+8*t+2*jj+1}, 16, v{TMP+8*t+2*jj}")
        a(f"{M32} {vr(D0,16)}, {vr(AOP+4*t,4)}, {vr(CB0+4*t,4)}, {'0' if t == 0 else vr(D0,16)}")
        a(f"{M32} {vr(D1,16)}, {vr(AOP+4*t,4)}, {vr(CB1+4*t,4)}, {'0' if t == 0 else vr(D1,16)}")
    for r in range(16):
        a(f"v_cvt_pk_bf16_f32 v{P+r}, v{D0+r}, v{D1+r}")
    for r in range(4):
        a(f"{M32} {vr(DB+16*r,16)}, {vr(G1,4)}, {vr(P+4*r,4)}, 0")
    for r in range(4):
        for sg in range(4):
            a(f"v_cvt_pk_bf16_f32 v{OUT+4*sg+r}, v{DB+16*r+2*sg}, v{DB+16*r+2*sg+1}")
    a("s_mov_b64 exec, s[76:77]")
    for r in range(4):
        for sg in range(4):
            a(f"v_cvt_pk_bf16_f32 v{OUT+4*sg+r}, v{DB+16*r+8+2*sg}, v{DB+16*r+8+2*sg+1}")
    a("s_mov_b64 exec, -1")
    for sg in range(4):
        a(f"buffer_store_dwordx4 {vr(OUT+4*sg,4)}, v41, {srd(S_WS)}, s74 offen offset:{sg*512} {cfg.st}")

def wt_dma(a):
    a(f"s_lshr_b32 s72, s{sOC}, 5")
    a("s_lshl_b32 s72, s72, 8")
    a(f"s_and_b32 s73, s{sOC}, 31")
    a("s_lshl_b32 s73, s73, 1")
    a("s_add_u32 s72, s72, s73")
    a(f"s_and_b32 s75, s{SW}, 1")
    a("s_add_u32 s72, s72, s75")
    a("v_and_b32 v2, 31, v0")
    a("v_lshlrev_b32 v2, 4, v2")
    a("v_cmp_gt_u32 vcc, 32, v0")
    a("s_lshl_b32 s73, s75, 13")
    if WT_LDS: a(f"s_add_u32 s73, s73, {WT_LDS}")
    for i in range(4):
        a(f"s_add_u32 s74, s72, {64*i}")
        a("s_sub_u32 s78, 0, s74")
        a("s_and_b32 s78, s78, 0x7ff")
        a("s_mul_i32 s74, s74, 450")
        a("s_and_b32 s74, s74, 0xfffffffc")
        a("s_mul_i32 s78, s78, 450")
        a("s_and_b32 s78, s78, 0xfffffffc")
        a("v_mov_b32 v3, s78")
        a("v_mov_b32 v4, s74")
        a("v_cndmask_b32 v3, v3, v4, vcc")
        a(f"v_add_u32 v{20+i}, v3, v2")
    for i in range(4):
        a(f"s_add_u32 m0, s73, {i*1024}")
        a(f"buffer_load_dwordx4 v{20+i}, {srd(S_WR)}, 0 offen {cfg.in_mod} lds")
        a(f"s_add_u32 m0, s73, {4096 + i*1024}")
        a(f"buffer_load_dwordx4 v{20+i}, {srd(S_WI)}, 0 offen {cfg.in_mod} lds")

def wt_addr(a):
    a(f"s_and_b32 s75, s{SW}, 1")
    a("s_mul_i32 s73, s75, 8194")
    if WT_LDS: a(f"s_add_u32 s73, s73, {WT_LDS}")
    a("v_and_b32 v3, 31, v0")
    a("v_lshrrev_b32 v9, 5, v0")
    a("v_bfrev_b32 v8, 1")
    a("v_mov_b32 v10, 0x200")
    a("v_cmp_eq_u32 s[76:77], 0, v3")
    for ps in range(4):
        a(f"v_add_u32 v2, {2*ps}, v9")
        a("v_and_b32 v4, 3, v2")
        a("v_cndmask_b32 v4, v2, v4, s[76:77]")
        if ps >= 2: a("v_cndmask_b32 v5, v3, 32, s[76:77]")
        kk = "v5" if ps >= 2 else "v3"
        a("v_add_u32 v6, 63, v4")
        a(f"v_sub_u32 v6, v6, {kk}")
        a("v_mul_u32_u24 v7, 37, v6")
        a("v_lshrrev_b32 v7, 8, v7")
        a("v_mul_u32_u24 v7, 7, v7")
        a("v_sub_u32 v6, v6, v7")
        a(f"v_lshl_add_u32 v6, v6, 6, {kk}")
        a("v_sub_u32 v7, 0x1c0, v6")
        a("v_cmp_lt_u32 vcc, 0xe0, v6")
        a("v_cndmask_b32 v6, v6, v7, vcc")
        a("v_cndmask_b32 v7, 0, v10, vcc")
        a("v_lshl_add_u32 v6, v6, 1, v7")
        a(f"v_add_u32 v{20+ps}, s73, v6")
        a(f"v_cndmask_b32 v{24+ps}, 0, v8, vcc")

def wt_compute(a):
    T, O = 64, 96
    a(f"s_and_b32 s75, s{SW}, 1")
    a(f"s_lshl_b32 s74, s{sOC}, 13")
    a("s_lshl_b32 s75, s75, 12")
    a("s_add_u32 s74, s74, s75")
    a(f"s_add_u32 s74, s74, {WS_WT}")
    a("v_lshlrev_b32 v9, 4, v0")
    def rd(ps):
        for i in range(4):
            a(f"ds_read_u16 v{T+8*ps+2*i}, v{20+ps} offset:{i*1024}")
            a(f"ds_read_u16 v{T+8*ps+2*i+1}, v{20+ps} offset:{i*1024 + 4096}")
    rd(0); rd(1)
    for ps in range(4):
        a(f"s_waitcnt lgkmcnt({8 if ps < 3 else 0})")
        for i in range(4):
            a(f"v_lshl_or_b32 v{O+4*ps+i}, v{T+8*ps+2*i+1}, 16, v{T+8*ps+2*i}")
            a(f"v_xor_b32 v{O+4*ps+i}, v{O+4*ps+i}, v{24+ps}")
        if ps < 2: rd(ps + 2)
        a(f"buffer_store_dwordx4 {vr(O+4*ps,4)}, v9, {srd(S_WS)}, s74 offen offset:{ps*1024} {cfg.st}")

C1, C2, TW, TWI = 160, 192, 224, 240
DAT, DD, PP, WP = 96, 128, 144, 152
def a2_scalars(a):
    a("s_and_b32 s60, s2, 7")
    a("s_lshr_b32 s61, s2, 3")
    a("s_and_b32 s69, s60, 3")
    a("s_lshr_b32 s70, s60, 2")
    a("s_cmp_eq_u32 s61, 0")
    a(f"s_cselect_b32 s{sA2P}, s70, 0")
    a("s_cselect_b32 s74, s69, 0")
    a("s_cmp_lg_u32 s74, 0")
    a(f"s_mov_b32 s{sA2S}, {f32(2.0/(2048*448))}")
    a(f"s_cselect_b32 s{sA2S}, {f32(4.0/(2048*448))}, s{sA2S}")
    a(f"s_cmp_lg_u32 s{sA2P}, 0")
    a(f"s_cselect_b32 s{sA2P}, 0x3e800000, 0")
    a("s_cmp_eq_u32 s60, 7")
    a(f"s_cselect_b32 s{sA2C}, s61, 0")

def a2_consts(a):
    a("v_and_b32 v5, 15, v0")
    a("v_lshrrev_b32 v6, 4, v0")
    a(f"s_lshl_b32 s69, s{SW}, 4")
    a("v_add_u32 v7, s69, v5")
    a("v_cvt_f32_u32 v8, v7")
    a("v_lshlrev_b32 v9, 2, v6")
    a("v_cvt_f32_u32 v9, v9")
    def quads(base, fl, inv, nblk):
        a(f"v_mul_f32 v11, {f32(inv)}, v{fl}")
        a("v_mul_f32 v12, v11, v9")
        a(f"v_mul_f32 v13, {f32(13.0)}, v11")
        for blk in range(nblk):
            for i in range(4):
                a("v_cos_f32 v14, v12")
                a("v_sin_f32 v15, v12")
                a(f"v_add_f32 v12, v12, v{11 if i < 3 else 13}")
                a(f"v_cvt_pk_bf16_f32 v{base+8*blk+i}, v14, v15")
                a(f"v_cvt_pk_bf16_f32 v{base+8*blk+4+i}, -v15, v14")
    quads(C1, 8, 1 / 64, 4)
    a("v_cvt_f32_u32 v1, v5")
    quads(C2, 1, 1 / 32, 2)
    a(f"v_add_f32 v2, {f32(16.0)}, v1")
    quads(C2 + 16, 2, 1 / 32, 2)
    a(f"v_mul_f32 v11, {f32(1/2048)}, v8")
    a("v_mul_f32 v12, v11, v9")
    a(f"v_mul_f32 v13, {f32(13.0)}, v11")
    for tau in range(2):
        for i in range(4):
            a(f"v_cos_f32 v{TW+2*(4*tau+i)}, v12")
            a(f"v_sin_f32 v{TW+2*(4*tau+i)+1}, v12")
            a(f"v_add_f32 v12, v12, v{11 if i < 3 else 13}")
    a("v_cvt_f32_u32 v3, s69")
    a("v_add_f32 v3, v3, v9")
    for tau in range(2):
        a(f"v_mul_f32 v11, {f32(1/2048)}, v{1+tau}")
        a(f"v_fma_f32 v12, v11, v3, s{sA2P}")
        for i in range(4):
            a("v_cos_f32 v14, v12")
            a("v_sin_f32 v15, v12")
            a("v_add_f32 v12, v12, v11")
            a(f"v_mul_f32 v{TWI+2*(4*tau+i)}, s{sA2S}, v14")
            a(f"v_mul_f32 v{TWI+2*(4*tau+i)+1}, s{sA2S}, v15")

def a2_load(a):
    a("v_and_b32 v5, 15, v0")
    a("v_lshrrev_b32 v6, 4, v0")
    a("v_lshrrev_b32 v7, 1, v5")
    a("v_and_b32 v8, 1, v5")
    a("v_lshl_add_u32 v11, v6, 4, v7")
    a("v_lshlrev_b32 v11, 13, v11")
    a("v_lshl_add_u32 v11, v8, 12, v11")
    a(f"s_lshl_b32 s60, s{SW}, 19")
    a(f"s_lshl_b32 s61, s{sOC}, 4")
    a("s_add_u32 s60, s60, s61")
    a(f"s_add_u32 s60, s60, {WS_X1}")
    a(f"s_lshl_b32 s62, s{SW}, 10")
    for tau in range(2):
        a(f"s_add_u32 m0, s62, {A2_X + tau*4096}")
        a(f"s_add_u32 s63, s60, {tau*8*8192}")
        a(f"buffer_load_dwordx4 v11, {srd(S_WS)}, s63 offen {cfg.ld} lds")
    a("v_lshl_add_u32 v10, v6, 5, v7")
    a("v_lshlrev_b32 v10, 13, v10")
    a("v_lshl_add_u32 v10, v8, 12, v10")
    a(f"s_lshl_b32 s60, s{SW}, 16")
    a("s_add_u32 s60, s60, s61")
    for mu in range(2):
        a(f"s_add_u32 s63, s60, {WS_WT + mu*128*8192}")
        a(f"buffer_load_dwordx4 {vr(WP+4*mu,4)}, v10, {srd(S_WS)}, s63 offen {cfg.ld}")

def cmul_tw(a, dst, dr, di, tw, t0):
    a(f"v_mul_f32 v{t0}, v{dr}, v{tw}")
    a(f"v_mul_f32 v{t0+1}, v{di}, v{tw}")
    a(f"v_fma_f32 v{t0}, v{di}, v{tw+1}, v{t0}")
    a(f"v_fma_f32 v{t0+1}, -v{dr}, v{tw+1}, v{t0+1}")
    a(f"v_cvt_pk_bf16_f32 v{dst}, v{t0}, v{t0+1}")

def a2_part1(a):
    a(f"v_add_u32 v4, {A2_X}, v{VL16}")
    for q in range(8):
        a(f"ds_read_b128 {vr(DAT+4*q,4)}, v4 offset:{q*1024}")
    for tau in range(2):
        a(f"s_waitcnt lgkmcnt({4 if tau == 0 else 0})")
        for kap in range(4):
            for c in range(2):
                D = vr(DD + 8 * tau + 4 * c, 4)
                a(f"{M16} {D}, {vr(DAT+4*(4*tau+kap),4)}, {vr(C1+8*kap+4*c,4)}, {'0' if kap == 0 else D}")
    for tau in range(2):
        for i in range(4):
            cmul_tw(a, PP + 4 * tau + i, DD + 8 * tau + i, DD + 8 * tau + 4 + i, TW + 2 * (4 * tau + i), 6 + 2 * (i & 1))
    for mu in range(2):
        for tau in range(2):
            for c in range(2):
                D = vr(DD + 8 * mu + 4 * c, 4)
                a(f"{M16} {D}, {vr(C2+8*(2*mu+tau)+4*c,4)}, {vr(PP+4*tau,4)}, {'0' if tau == 0 else D}")
    P2 = DAT
    WU = DAT + 8
    for e in range(8):
        a(f"v_lshlrev_b32 v{WU+2*e}, 16, v{WP+e}")
        a(f"v_and_b32 v{WU+2*e+1}, 0xffff0000, v{WP+e}")
    for mu in range(2):
        for i in range(4):
            e = 4 * mu + i
            dr, di = DD + 8 * mu + i, DD + 8 * mu + 4 + i
            t0 = 6 + 2 * (i & 1)
            wr, wi = WU + 2 * e, WU + 2 * e + 1
            a(f"v_mul_f32 v{t0}, v{dr}, v{wr}")
            a(f"v_mul_f32 v{t0+1}, v{dr}, v{wi}")
            a(f"v_fma_f32 v{t0}, -v{di}, v{wi}, v{t0}")
            a(f"v_fma_f32 v{t0+1}, v{di}, v{wr}, v{t0+1}")
            a(f"v_cvt_pk_bf16_f32 v{P2+4*mu+i}, v{t0+1}, v{t0}")
    for tau in range(2):
        for mu in range(2):
            for c in range(2):
                D = vr(DD + 8 * tau + 4 * c, 4)
                a(f"{M16} {D}, {vr(P2+4*mu,4)}, {vr(C2+8*(2*tau+mu)+4*c,4)}, {'0' if mu == 0 else D}")
    a(f"s_lshl_b32 s60, s{SW}, 10")
    a("v_add_u32 v11, s60, v4")
    for tau in range(2):
        for i in range(4):
            cmul_tw(a, PP + 4 * tau + i, DD + 8 * tau + i, DD + 8 * tau + 4 + i, TWI + 2 * (4 * tau + i), 6 + 2 * (i & 1))
        a(f"ds_write_b128 v11, {vr(PP+4*tau,4)} offset:{8192 + tau*4096}")
    a("s_waitcnt lgkmcnt(0)")

def a2_part2(a):
    a(f"v_add_u32 v4, {A2_X}, v{VL16}")
    for q in range(8):
        a(f"ds_read_b128 {vr(DAT+4*q,4)}, v4 offset:{8192 + q*1024}")
    a("v_and_b32 v5, 15, v0")
    a("v_lshrrev_b32 v6, 4, v0")
    a("v_lshlrev_b32 v11, 4, v5")
    a("v_lshl_add_u32 v11, v6, 9, v11")
    a(f"s_lshl_b32 s60, s{sOC}, 13")
    a(f"s_lshl_b32 s61, s{SW}, 11")
    a("s_add_u32 s60, s60, s61")
    a(f"s_add_u32 s60, s60, {WS_Z}")
    for tau in range(2):
        a(f"s_waitcnt lgkmcnt({4 if tau == 0 else 0})")
        for kap in range(4):
            for c in range(2):
                D = vr(DD + 8 * tau + 4 * c, 4)
                a(f"{M16} {D}, {vr(C1+8*kap+4*c,4)}, {vr(DAT+4*(4*tau+kap),4)}, {'0' if kap == 0 else D}")
    for tau in range(2):
        for i in range(4):
            a(f"v_cvt_pk_bf16_f32 v{PP+4*tau+i}, v{DD+8*tau+4+i}, v{DD+8*tau+i}")
        a(f"buffer_store_dwordx4 {vr(PP+4*tau,4)}, v11, {srd(S_WS)}, s60 offen offset:{tau*256} {cfg.st}")

ZD, BC, CI = 96, 128, 160
def a3_consts(a, piece):
    a("v_lshrrev_b32 v29, 5, v0")
    a("v_cvt_f32_u32 v34, v29")
    a("v_mul_f32 v34, 4.0, v34")
    if piece == 0:
        a("v_and_b32 v30, 7, v0")
        a("v_bfe_u32 v32, v0, 3, 2")
        a("v_cmp_gt_u32 s[58:59], 7, v30")
        for rp in range(4):
            a(f"v_cmp_eq_u32 vcc, {rp}, v32")
            a(f"s_and_b64 s[{76+2*rp}:{77+2*rp}], vcc, s[58:59]")
        a("v_cvt_f32_u32 v33, v30")
        a(f"v_mul_f32 v33, {f32(1/7)}, v33")
        a("v_mul_f32 v35, v33, v34")
        for ap in range(4):
            if ap == 3:
                for rp in range(4): a(f"s_mov_b32 s{77+2*rp}, 0")
            a("v_cos_f32 v36, v35")
            a("v_sin_f32 v37, v35")
            a("v_add_f32 v35, v35, v33")
            a("v_cvt_pk_bf16_f32 v30, v36, -v37")
            a("v_cvt_pk_bf16_f32 v32, v37, v36")
            for rp in range(4):
                a(f"v_cndmask_b32 v{BC+8*ap+rp}, 0, v30, s[{76+2*rp}:{77+2*rp}]")
                a(f"v_cndmask_b32 v{BC+8*ap+4+rp}, 0, v32, s[{76+2*rp}:{77+2*rp}]")
        return
    nt, hf = (piece - 1) >> 1, (piece - 1) & 1
    a("v_and_b32 v28, 31, v0")
    if nt: a(f"v_add_u32 v28, 32, v28")
    a("v_cvt_f32_u32 v32, v28")
    a(f"v_mul_f32 v32, {f32(1/64)}, v32")
    if hf: a(f"v_add_f32 v34, {f32(16.0)}, v34")
    a("v_mul_f32 v35, v32, v34")
    a(f"v_mul_f32 v33, {f32(5.0)}, v32")
    for gg in range(2 * hf, 2 * hf + 2):
        for i in range(4):
            a("v_cos_f32 v36, v35")
            a("v_sin_f32 v37, v35")
            a(f"v_add_f32 v35, v35, v{32 if i < 3 else 33}")
            a(f"v_cvt_pk_bf16_f32 v{CI+16*nt+4*gg+i}, v36, -v37")
    if hf == 0:
        a("v_and_b32 v30, 1, v0")
        a("v_lshlrev_b32 v30, 31, v30")
        a("v_or_b32 v30, 0x3f003f00, v30")
        a("v_cmp_gt_u32 vcc, 32, v0")
        a(f"v_cndmask_b32 v{CI+16*nt}, v{CI+16*nt}, v30, vcc")

def a3_load(a):
    a("v_and_b32 v2, 31, v0")
    a("v_lshrrev_b32 v3, 5, v0")
    a("v_lshl_add_u32 v4, v3, 7, v2")
    a("v_lshlrev_b32 v4, 13, v4")
    a(f"v_mov_b32 v6, {OOB}")
    a("v_cmp_eq_u32 vcc, 32, v0")
    a("v_cndmask_b32 v8, v4, v6, vcc")
    a("v_mov_b32 v7, 0x100000")
    a("v_cmp_eq_u32 vcc, 0, v0")
    a("v_cndmask_b32 v9, v8, v7, vcc")
    a("v_cmp_gt_u32 vcc, 32, v0")
    a("v_cndmask_b32 v10, v6, v8, vcc")
    a("v_cndmask_b32 v11, v6, v9, vcc")
    a(f"s_lshl_b32 s60, s{sOC}, 5")
    a(f"s_and_b32 s61, s{SW}, 1")
    a("s_lshl_b32 s61, s61, 4")
    a("s_add_u32 s60, s60, s61")
    for ap in range(4):
        a(f"s_add_u32 s61, s60, {WS_Z + ap*262144}")
        for c in range(2):
            va = 8 + c + (2 if ap == 3 else 0)
            a(f"buffer_load_dwordx4 {vr(ZD+8*ap+4*c,4)}, v{va}, {srd(S_WS)}, s61 offen {cfg.ld}")

def a3_compute(a):
    DR, DI, P3, DO, AD = 192, 208, 96, 128, 224
    a("v_and_b32 v2, 31, v0")
    a("v_lshrrev_b32 v3, 5, v0")
    a("v_mul_u32_u24 v4, 7, v2")
    a("v_lshl_add_u32 v4, v3, 8, v4")
    a(f"s_and_b32 s62, s{SW}, 1")
    a("s_mul_i32 s64, s62, 7168")
    a(f"s_add_u32 s64, s64, {A3_L}")
    for ap in range(4):
        a(f"{M32} {vr(DR,16)}, {vr(ZD+8*ap,4)}, {vr(BC+8*ap,4)}, {'0' if ap == 0 else vr(DR,16)}")
        a(f"{M32} {vr(DI,16)}, {vr(ZD+8*ap+4,4)}, {vr(BC+8*ap+4,4)}, {'0' if ap == 0 else vr(DI,16)}")
    for nt in range(2):
        for i in range(4):
            a(f"v_add_u32 v6, {224*nt + 64*i}, v4")
            a("v_subrev_u32 v7, 0x1c0, v6")
            a("v_min_u32 v6, v6, v7")
            a(f"v_lshl_add_u32 v{AD+4*nt+i}, v6, 1, s64")
    a("s_add_u32 s65, s64, 3584")
    a("v_mov_b32 v6, s65")
    a("v_cmp_gt_u32 vcc, 32, v0")
    a(f"v_cndmask_b32 v{AD+3}, v6, v{AD+3}, vcc")
    a(f"v_cndmask_b32 v{AD+7}, v6, v{AD+7}, vcc")
    for r in range(16):
        a(f"v_cvt_pk_bf16_f32 v{P3+r}, v{DR+r}, v{DI+r}")
    for gg in range(4):
        for nt in range(2):
            D = vr(DO + 16 * nt, 16)
            a(f"{M32} {D}, {vr(P3+4*gg,4)}, {vr(CI+16*nt+4*gg,4)}, {'0' if gg == 0 else D}")
    a("v_lshlrev_b32 v5, 4, v0")
    a("v_add_u32 v6, s64, v5")
    a(f"s_lshr_b32 s72, s{sOC}, 4")
    a("s_lshl_b32 s72, s72, 7")
    a(f"s_and_b32 s73, s{sOC}, 15")
    a("s_lshl_b32 s73, s73, 1")
    a("s_add_u32 s72, s72, s73")
    a("s_add_u32 s72, s72, s62")
    a("s_mul_i32 s72, s72, 1792")
    for nt in range(2):
        for rp in range(2):
            for i in range(4):
                t = 232 + 8 * nt + 4 * rp + i
                a(f"v_cvt_pk_bf16_f32 v{t}, v{DO+16*nt+8*rp+i}, v{DO+16*nt+8*rp+4+i}")
                a(f"ds_write_b16 v{AD+4*nt+i}, v{t} offset:{2*rp*896}")
                a(f"ds_write_b16_d16_hi v{AD+4*nt+i}, v{t} offset:{(2*rp+1)*896}")
    a("s_waitcnt lgkmcnt(0)")
    for r in range(4):
        a(f"ds_read_b128 {vr(192+4*r,4)}, v6 offset:{r*896}")
    a("s_mov_b32 exec_hi, 0x00ffffff")
    for r in range(4):
        a(f"s_waitcnt lgkmcnt({3-r})")
        a(f"s_add_u32 s73, s72, {r*32*1792}")
        a(f"buffer_store_dwordx4 {vr(192+4*r,4)}, v5, {srd(S_OUT)}, s73 offen")
    a("s_mov_b64 exec, -1")

BF, OFR, ACC3 = 64, 192, 8
def b3_wo_dma(a, groups):
    a(f"s_min_u32 s61, s{SW}, 6")
    a(f"s_lshl_b32 s60, s61, 6")
    a("v_add_u32 v2, s60, v0")
    a("v_mul_u32_u24 v3, 0x925, v2")
    a("v_lshrrev_b32 v3, 15, v3")
    a("v_mul_u32_u24 v4, 14, v3")
    a("v_sub_u32 v4, v2, v4")
    a("v_mul_u32_u24 v3, 0x380, v3")
    a("v_lshl_add_u32 v2, v4, 4, v3")
    a(f"s_mul_i32 s60, s{sCG4}, 224")
    a(f"s_lshl_b32 s61, s61, 10")
    for grp in groups:
        a(f"s_add_u32 m0, s61, {B3_WO + grp*7168}")
        a(f"s_add_u32 s62, s60, {grp*32*896}")
        a(f"buffer_load_dwordx4 v2, {srd(S_WO)}, s62 offen lds")

def b3_o_dma(a):
    a("v_lshlrev_b32 v5, 4, v0")
    a(f"s_lshl_b32 s64, s{sQ32}, 15")
    a(f"s_lshl_b32 s65, s{SW}, 12")
    a("s_add_u32 s64, s64, s65")
    a(f"s_add_u32 s64, s64, {WS_OF}")
    a(f"s_add_u32 m0, s65, {B3_O}")
    for q in range(4):
        a(f"buffer_load_dwordx4 v5, {srd(S_WS)}, s64 offen offset:{q*1024} {cfg.ld} lds")

def b3_wfrags(a, ntiles):
    a("v_lshrrev_b32 v2, 4, v0")
    a("v_lshrrev_b32 v3, 5, v0")
    a("v_bfe_u32 v4, v0, 4, 1")
    a("v_bfe_u32 v6, v0, 2, 2")
    a("v_lshl_add_u32 v6, v4, 2, v6")
    a("v_lshl_add_u32 v6, v3, 4, v6")
    a("v_mul_u32_u24 v6, 0xe0, v6")
    a("v_and_b32 v7, 3, v0")
    if ntiles == 2:
        a("v_lshl_add_u32 v6, v7, 4, v6")
        a(f"s_lshr_b32 s64, s{SW}, 1")
        a("s_lshl_b32 s64, s64, 6")
        a(f"s_add_u32 s64, s64, {B3_WO}")
    else:
        a("v_lshl_add_u32 v6, v7, 3, v6")
        a(f"s_mov_b32 s64, {B3_WO + 192}")
    a("v_add_u32 v16, s64, v6")
    a("v_cmp_eq_u32 vcc, 3, v2")
    a("v_mov_b32 v7, 0x700")
    a("v_cndmask_b32 v7, v7, 0, vcc")
    a("v_add_u32 v17, v16, v7")
    a("v_add_u32 v18, 0xc400, v16")
    a("v_add_u32 v19, 0xc400, v17")
    for hd in range(16):
        for tl in range(ntiles):
            for e in range(2):
                base = 16 + e + (2 if hd >= 8 else 0)
                off = (28 * (hd & 7)) * 224 + tl * 8
                a(f"ds_read_b64_tr_b16 {vr(BF + 4*(ntiles*hd+tl) + 2*e, 2)}, v{base} offset:{off}")

def b3_mma(a, ntiles):
    a(f"s_and_b32 s62, s{SW}, 1")
    a("s_lshl_b32 s64, s62, 14")
    if B3_O: a(f"s_add_u32 s64, s64, {B3_O}")
    a("v_lshlrev_b32 v5, 4, v0")
    a("v_add_u32 v5, s64, v5")
    for hd in range(16):
        a(f"ds_read_b128 {vr(OFR+4*hd,4)}, v5 offset:{hd*1024}")
    a("v_and_b32 v2, 15, v0")
    a("v_mul_u32_u24 v2, 0x700, v2")
    a("v_lshrrev_b32 v3, 4, v0")
    a(f"v_lshl_add_u32 v2, v3, {4 if ntiles == 2 else 3}, v2")
    a(f"s_lshl_b32 s64, s{sQ32}, 5")
    a("s_lshl_b32 s65, s62, 4")
    a("s_add_u32 s64, s64, s65")
    a("s_mul_i32 s64, s64, 1792")
    a(f"s_mul_i32 s65, s{sCG4}, 224")
    a("s_add_u32 s64, s64, s65")
    a(f"s_lshr_b32 s65, s{SW}, 1")
    a("s_lshl_b32 s65, s65, 6")
    a("s_add_u32 s64, s64, s65")
    a("s_add_u32 s64, s64, 896")
    for hd in range(16):
        a(f"s_waitcnt lgkmcnt({15-hd})")
        for tl in range(ntiles):
            D = vr(ACC3 + 4 * tl, 4)
            a(f"{M16} {D}, {vr(BF+4*(ntiles*hd+tl),4)}, {vr(OFR+4*hd,4)}, {'0' if hd == 0 else D}")
    for r in range(2 * ntiles):
        a(f"v_cvt_pk_bf16_f32 v{20+r}, v{ACC3+2*r}, v{ACC3+2*r+1}")
    if ntiles == 2:
        a(f"buffer_store_dwordx4 v[20:23], v2, {srd(S_OUT)}, s64 offen")
    else:
        a(f"buffer_store_dwordx2 v[20:21], v2, {srd(S_OUT)}, s64 offen")

sG, sL, sST, sPC, sNS, sBLK = 50, 51, 52, 53, 54, 55
def at_local(a):
    a(f"s_lshl_b32 s64, s{sKH}, 13")
    a(f"s_add_u32 s64, s64, {OWN_SLOT*AT_SLOT}")
    a(f"v_add_u32 v{VCUR}, s64, v{VL16}")
    K2 = 96; V2 = 104
    a(f"ds_read_b128 {vr(Kf,4)}, v{VCUR}")
    a(f"ds_read_b128 {vr(Kf+4,4)}, v{VCUR} offset:1024")
    a(f"ds_read_b128 {vr(K2,4)}, v{VCUR} offset:4096")
    a(f"ds_read_b128 {vr(K2+4,4)}, v{VCUR} offset:5120")
    a(f"ds_read_b128 {vr(Vf,4)}, v{VCUR} offset:2048")
    a(f"ds_read_b128 {vr(Vf+4,4)}, v{VCUR} offset:3072")
    a(f"ds_read_b128 {vr(V2,4)}, v{VCUR} offset:6144")
    a(f"ds_read_b128 {vr(V2+4,4)}, v{VCUR} offset:7168")
    a("s_waitcnt lgkmcnt(6)")
    a(f"{M32} {vr(S0,16)}, {vr(Kf,4)}, {vr(Qr,4)}, 0")
    a(f"{M32} {vr(S0,16)}, {vr(Kf+4,4)}, {vr(Qr+4,4)}, {vr(S0,16)}")
    a("s_waitcnt lgkmcnt(4)")
    a(f"{M32} {vr(S1,16)}, {vr(K2,4)}, {vr(Qr,4)}, 0")
    a(f"{M32} {vr(S1,16)}, {vr(K2+4,4)}, {vr(Qr+4,4)}, {vr(S1,16)}")
    a("s_waitcnt lgkmcnt(0)")
    for S, V, first in ((S0, Vf, True), (S1, V2, False)):
        for e in range(16): a(f"v_exp_f32 v{S+e}, v{S+e}")
        for r in range(8): a(f"v_cvt_pk_bf16_f32 v{Pr+r}, v{S+2*r}, v{S+2*r+1}")
        a(f"{M32} {vr(Or,16)}, {vr(V,4)}, {vr(Pr,4)}, {'0' if first else vr(Or,16)}")
        a(f"{M32} {vr(Or,16)}, {vr(V+4,4)}, {vr(Pr+4,4)}, {vr(Or,16)}")

def at_dma(a):
    a(f"s_lshl_b32 s64, s{sBLK}, 14")
    a(f"s_add_u32 s64, s64, s{sG}")
    a(f"s_mov_b32 m0, s{sL}")
    for q in range(2):
        a(f"buffer_load_dwordx4 v{VL16}, {srd(S_WS)}, s64 offen offset:{q*1024} {cfg.ld} lds")
    a(f"s_add_u32 s{sBLK}, s{sBLK}, 1")
    a(f"s_and_b32 s{sBLK}, s{sBLK}, 15")
    a(f"s_add_u32 s{sL}, s{sL}, {AT_SLOT}")
    a(f"s_and_b32 s{sL}, s{sL}, {AT_SLOT*AT_R-1}")

sCO, sRET = 56, 58
class VQ:
    def __init__(self): self.q = []
    def issue(self, tag, n=1): self.q += [tag] * n
    def drain(self): self.q = []
    def need(self, tags):
        idx = max([i for i, t in enumerate(self.q) if t in tags], default=-1)
        if idx < 0: return None
        self.q = self.q[idx + 1:]
        return len(self.q)
    def wait(self, a, tags):
        n = self.need(tags)
        if n is not None: a(f"s_waitcnt vmcnt({n})")

def set_co(a, lab):
    ref = a.newlabel("CO_ref")
    a(f"s_getpc_b64 s[{sCO}:{sCO+1}]")
    a.label(ref)
    a(f"s_add_u32 s{sCO}, s{sCO}, {lab}-{ref}")
    a(f"s_addc_u32 s{sCO+1}, s{sCO+1}, 0")

def coroutine(a, lab, hooks, pre):
    a.label(lab)
    vq = VQ()
    vq.issue("kv2", 2); vq.issue("kv3", 2)
    for st in range(1, 16):
        if st < 15:
            n = vq.need([f"kv{st+1}"] + pre.get(st, []))
            a(f"s_waitcnt lgkmcnt(1)" if n is None else f"s_waitcnt vmcnt({n}) lgkmcnt(1)")
            a("s_barrier")
            if st <= 12:
                at_dma(a); vq.issue(f"kv{st+3}", 2)
            for fn in hooks.get(st, []): fn(a, vq)
        a(f"s_swappc_b64 s[{sCO}:{sCO+1}], s[{sRET}:{sRET+1}]")

def at_main(a):
    a(f"s_lshl_b32 s{sPC}, s{SW}, 11")
    a(f"s_lshl_b32 s{sG}, s{sHD}, 18")
    a(f"s_add_u32 s{sG}, s{sG}, s{sPC}")
    if WS_KV: a(f"s_add_u32 s{sG}, s{sG}, {WS_KV}")
    a(f"s_mov_b32 s{sL}, s{sPC}")
    a(f"s_add_u32 s{sBLK}, s{sRB}, 1")
    a(f"s_and_b32 s{sBLK}, s{sBLK}, 15")
    for st in range(3): at_dma(a)
    a(f"s_lshl_b32 s64, s{sKH}, 13")
    a(f"v_add_u32 v{VCUR}, s64, v{VL16}")
    a(f"v_add_u32 v{VNXT}, {AT_SLOT}, v{VCUR}")
    a(f"s_mov_b32 s{sNS}, {AT_SLOT}")
    for r in range(8): a(f"v_mov_b32 v{Pr+r}, 0")
    for r in range(8): a(f"v_mov_b32 v{Vf+r}, 0")
    for r in range(4): a(f"v_mov_b32 v{S1+12+r}, 0")
    a("s_waitcnt vmcnt(4)")
    a("s_barrier")
    stamp(a, 8)
    a(f"ds_read_b128 {vr(Kf,4)}, v{VCUR}")
    a(f"ds_read_b128 {vr(Kf+4,4)}, v{VCUR} offset:1024")
    a("s_waitcnt lgkmcnt(0)")
    a(f"{M32} {vr(S0,16)}, {vr(Kf,4)}, {vr(Qr,4)}, 0")
    a(f"{M32} {vr(S0,16)}, {vr(Kf+4,4)}, {vr(Qr+4,4)}, {vr(S0,16)}")
    a(f"ds_read_b128 {vr(Kf,4)}, v{VCUR} offset:4096")
    a(f"ds_read_b128 {vr(Kf+4,4)}, v{VCUR} offset:5120")
    a("s_waitcnt lgkmcnt(0)")
    a(f"s_mov_b32 s{sST}, 1")
    loop = a.newlabel("AT_loop")
    a.label(loop)
    for tt in range(2):
        Sc = S0 if tt == 0 else S1
        Sn = S1 if tt == 0 else S0
        def grp(q):
            for e in range(4): a(f"v_exp_f32 v{Sc+4*q+e}, v{Sc+4*q+e}")
            if q == 0:
                a(f"v_cvt_pk_bf16_f32 v{Pr+6}, v{Sn+12}, v{Sn+13}")
                a(f"v_cvt_pk_bf16_f32 v{Pr+7}, v{Sn+14}, v{Sn+15}")
            else:
                a(f"v_cvt_pk_bf16_f32 v{Pr+2*q-2}, v{Sc+4*q-4}, v{Sc+4*q-3}")
                a(f"v_cvt_pk_bf16_f32 v{Pr+2*q-1}, v{Sc+4*q-2}, v{Sc+4*q-1}")
        a("s_waitcnt lgkmcnt(3)")
        a(f"{M32} {vr(Or,16)}, {vr(Vf,4)}, {vr(Pr,4)}, {vr(Or,16)}")
        a(f"ds_read_b128 {vr(Vf,4)}, v{VCUR} offset:{tt*4096+2048}")
        grp(0)
        a("s_waitcnt lgkmcnt(2)")
        a(f"{M32} {vr(Sn,16)}, {vr(Kf,4)}, {vr(Qr,4)}, 0")
        grp(1)
        a(f"{M32} {vr(Sn,16)}, {vr(Kf+4,4)}, {vr(Qr+4,4)}, {vr(Sn,16)}")
        if tt == 0:
            a(f"s_swappc_b64 s[{sRET}:{sRET+1}], s[{sCO}:{sCO+1}]")
        a(f"ds_read_b128 {vr(Kf,4)}, v{VNXT} offset:{tt*4096}")
        a(f"ds_read_b128 {vr(Kf+4,4)}, v{VNXT} offset:{tt*4096+1024}")
        grp(2)
        a("s_waitcnt lgkmcnt(3)")
        a(f"{M32} {vr(Or,16)}, {vr(Vf+4,4)}, {vr(Pr+4,4)}, {vr(Or,16)}")
        a(f"ds_read_b128 {vr(Vf+4,4)}, v{VCUR} offset:{tt*4096+3072}")
        grp(3)
    a(f"v_mov_b32 v{VCUR}, v{VNXT}")
    a(f"s_add_u32 s{sNS}, s{sNS}, {AT_SLOT}")
    a(f"s_and_b32 s{sNS}, s{sNS}, {AT_SLOT*AT_R-1}")
    a(f"s_lshl_b32 s64, s{sKH}, 13")
    a(f"s_add_u32 s64, s64, s{sNS}")
    a(f"v_add_u32 v{VNXT}, s64, v{VL16}")
    a(f"s_add_u32 s{sST}, s{sST}, 1")
    a(f"s_cmp_lt_u32 s{sST}, 16")
    a(f"s_cbranch_scc1 {loop}")
    a(f"v_cvt_pk_bf16_f32 v{Pr+6}, v{S1+12}, v{S1+13}")
    a(f"v_cvt_pk_bf16_f32 v{Pr+7}, v{S1+14}, v{S1+15}")
    a("s_waitcnt lgkmcnt(0)")
    a(f"{M32} {vr(Or,16)}, {vr(Vf,4)}, {vr(Pr,4)}, {vr(Or,16)}")
    a(f"{M32} {vr(Or,16)}, {vr(Vf+4,4)}, {vr(Pr+4,4)}, {vr(Or,16)}")

def at_finish(a):
    a(f"s_lshl_b32 s64, s{SW}, 11")
    a(f"v_add_u32 v2, s64, v{VL16}")
    a("s_xor_b32 s64, s64, 8192")
    a(f"v_add_u32 v3, s64, v{VL16}")
    a("v_and_b32 v5, 31, v0")
    a(f"s_lshl_b32 s64, s{SW}, 7")
    a("v_lshlrev_b32 v6, 2, v5")
    a("v_add_u32 v7, s64, v6")
    a("s_xor_b32 s64, s64, 512")
    a("v_add_u32 v8, s64, v6")
    lk1, ljoin = a.newlabel("AF_k1"), a.newlabel("AF_j")
    a("s_mov_b32 exec_lo, 0")
    a(f"ds_write_b32 v7, v{Or+12} offset:49152")
    a("s_mov_b64 exec, -1")
    a(f"s_cmp_eq_u32 s{sKH}, 0")
    a(f"s_cbranch_scc0 {lk1}")
    a(f"ds_write_b128 v2, {vr(Or+8,4)}")
    a(f"ds_write_b128 v2, {vr(Or+12,4)} offset:1024")
    a(f"s_branch {ljoin}")
    a.label(lk1)
    a(f"ds_write_b128 v2, {vr(Or,4)}")
    a(f"ds_write_b128 v2, {vr(Or+4,4)} offset:1024")
    for r in range(8): a(f"v_mov_b32 v{Or+r}, v{Or+8+r}")
    a.label(ljoin)
    a("s_waitcnt vmcnt(0) lgkmcnt(0)")
    a("s_barrier")
    a("ds_read_b32 v9, v7 offset:49152")
    a("ds_read_b32 v10, v8 offset:49152")
    a(f"ds_read_b128 {vr(S0,4)}, v3")
    a(f"ds_read_b128 {vr(S0+4,4)}, v3 offset:1024")
    a("v_bfe_u32 v2, v0, 4, 1")
    a("v_lshlrev_b32 v2, 14, v2")
    a("v_lshrrev_b32 v3, 5, v0")
    a("v_lshl_add_u32 v2, v3, 8, v2")
    a("v_and_b32 v3, 15, v0")
    a("v_lshl_add_u32 v11, v3, 4, v2")
    a(f"s_lshl_b32 s64, s{sRB}, 3")
    a(f"s_lshl_b32 s65, s{sQT}, 1")
    a("s_add_u32 s64, s64, s65")
    a("s_lshl_b32 s64, s64, 4")
    a(f"s_add_u32 s64, s64, s{sHD}")
    a("s_lshl_b32 s64, s64, 10")
    a(f"s_lshl_b32 s65, s{sKH}, 9")
    a("s_add_u32 s64, s64, s65")
    a(f"s_add_u32 s66, s64, {WS_OF}")
    a(f"s_cmp_eq_u32 s{sKH}, 0")
    a("s_mov_b32 s78, -1")
    a("s_cselect_b32 s79, -1, 0")
    a("s_waitcnt lgkmcnt(2)")
    a("v_add_f32 v9, v9, v10")
    a("s_waitcnt lgkmcnt(0)")
    for r in range(8): a(f"v_add_f32 v{Or+r}, v{Or+r}, v{S0+r}")

def at_check(a, slow_label):
    a("v_cmp_nle_f32 s[76:77], 0.5, v9")
    a(f"v_cmp_nge_f32 vcc, {f32(2.0**60)}, v9")
    a("s_or_b64 s[76:77], s[76:77], vcc")
    a(f"v_add_f32 v10, abs(v{Or}), abs(v{Or+1})")
    for r in range(2, 8): a(f"v_add_f32 v10, v10, abs(v{Or+r})")
    a("s_movk_i32 s65, 0x207")
    a("v_cmp_class_f32 vcc, v10, s65")
    a("s_or_b64 s[76:77], s[76:77], vcc")
    a("s_cmp_lg_u64 s[76:77], 0")
    a(f"s_cbranch_scc1 {slow_label}")

def at_store(a):
    a("v_rcp_f32 v10, v9")
    for r in range(8): a(f"v_mul_f32 v{Or+r}, v{Or+r}, v10")
    for r in range(4): a(f"v_cvt_pk_bf16_f32 v{Pr+r}, v{Or+2*r}, v{Or+2*r+1}")
    a(f"v_cndmask_b32 v{Pr+2}, 0, v{Pr+2}, s[78:79]")
    a(f"v_cndmask_b32 v{Pr+3}, 0, v{Pr+3}, s[78:79]")
    a(f"buffer_store_dwordx4 {vr(Pr,4)}, v11, {srd(S_WS)}, s66 offen {cfg.st}")

def at_slow(a, lab, ret):
    a.label(lab)
    a(f"s_lshl_b32 s60, s{sHD}, 18")
    if WS_KV: a(f"s_add_u32 s60, s60, {WS_KV}")
    a("v_mov_b32 v9, 0xff800000")
    a("s_mov_b32 s61, 0")
    l1 = a.newlabel("SL1")
    a.label(l1)
    a("s_add_u32 s62, s60, s61")
    a(f"buffer_load_dwordx4 {vr(Kf,4)}, v{VL16}, {srd(S_WS)}, s62 offen {cfg.ld}")
    a(f"buffer_load_dwordx4 {vr(Kf+4,4)}, v{VL16}, {srd(S_WS)}, s62 offen offset:1024 {cfg.ld}")
    a("s_waitcnt vmcnt(0)")
    a(f"{M32} {vr(S0,16)}, {vr(Kf,4)}, {vr(Qr,4)}, 0")
    a(f"{M32} {vr(S0,16)}, {vr(Kf+4,4)}, {vr(Qr+4,4)}, {vr(S0,16)}")
    for r in range(8): a(f"v_max3_f32 v9, v9, v{S0+2*r}, v{S0+2*r+1}")
    a("s_add_u32 s61, s61, 4096")
    a("s_cmp_lt_u32 s61, 262144")
    a(f"s_cbranch_scc1 {l1}")
    a("v_mov_b32 v10, v9")
    a("v_permlane32_swap_b32 v9, v10")
    a("v_max_f32 v9, v9, v10")
    for r in range(16): a(f"v_mov_b32 v{Or+r}, 0")
    a("s_mov_b32 s61, 0")
    l2 = a.newlabel("SL2")
    a.label(l2)
    a("s_add_u32 s62, s60, s61")
    a(f"buffer_load_dwordx4 {vr(Kf,4)}, v{VL16}, {srd(S_WS)}, s62 offen {cfg.ld}")
    a(f"buffer_load_dwordx4 {vr(Kf+4,4)}, v{VL16}, {srd(S_WS)}, s62 offen offset:1024 {cfg.ld}")
    a(f"buffer_load_dwordx4 {vr(Vf,4)}, v{VL16}, {srd(S_WS)}, s62 offen offset:2048 {cfg.ld}")
    a(f"buffer_load_dwordx4 {vr(Vf+4,4)}, v{VL16}, {srd(S_WS)}, s62 offen offset:3072 {cfg.ld}")
    a("s_waitcnt vmcnt(0)")
    a(f"{M32} {vr(S0,16)}, {vr(Kf,4)}, {vr(Qr,4)}, 0")
    a(f"{M32} {vr(S0,16)}, {vr(Kf+4,4)}, {vr(Qr+4,4)}, {vr(S0,16)}")
    for e in range(16): a(f"v_sub_f32 v{S0+e}, v{S0+e}, v9")
    for e in range(16): a(f"v_exp_f32 v{S0+e}, v{S0+e}")
    for r in range(8): a(f"v_cvt_pk_bf16_f32 v{Pr+r}, v{S0+2*r}, v{S0+2*r+1}")
    a(f"{M32} {vr(Or,16)}, {vr(Vf,4)}, {vr(Pr,4)}, {vr(Or,16)}")
    a(f"{M32} {vr(Or,16)}, {vr(Vf+4,4)}, {vr(Pr+4,4)}, {vr(Or,16)}")
    a("s_add_u32 s61, s61, 4096")
    a("s_cmp_lt_u32 s61, 262144")
    a(f"s_cbranch_scc1 {l2}")
    a(f"v_mov_b32 v9, v{Or+12}")
    a(f"v_mov_b32 v10, v{Or+12}")
    a("v_permlane32_swap_b32 v10, v9")
    k0 = a.newlabel("SL_k0")
    a(f"s_cmp_eq_u32 s{sKH}, 0")
    a(f"s_cbranch_scc1 {k0}")
    for r in range(8): a(f"v_mov_b32 v{Or+r}, v{Or+8+r}")
    a.label(k0)
    a(f"s_branch {ret}")

def kernel(a):
    a(f".globl {KN}\n.p2align 8\n.type {KN},@function")
    a.label(KN)
    end = a.newlabel("K_end")
    stamp_init(a)
    prologue(a, end)
    a2_scalars(a)
    lload, latt = a.newlabel("K_load"), a.newlabel("K_att")
    coA, coN, coB, coC = "CO_A", "CO_N", "CO_B", "CO_C"
    def only(w, fn):
        sk = a.newlabel("K_sk")
        a(f"s_cmp_lg_u32 s{SW}, {w}")
        a(f"s_cbranch_scc1 {sk}")
        fn()
        a.label(sk)
    a(f"s_cmp_ge_u32 s{SW}, 4")
    a(f"s_cbranch_scc1 {lload}")
    only(0, lambda: flag_reset(a))
    a2_consts(a)
    only(0, lambda: flag_reset_done(a))
    set_co(a, coA)
    nc = a.newlabel("K_nc")
    a(f"s_cmp_eq_u32 s{sA2C}, 0")
    a(f"s_cbranch_scc1 {nc}")
    set_co(a, coN)
    a.label(nc)
    stamp(a, 2)
    b1_compute(a)
    b1_epilogue(a)
    a(f"s_lshl_b32 s60, s{sHD}, 8")
    a(f"s_lshl_b32 s61, s{sRB}, 4")
    a("s_add_u32 s60, s60, s61")
    a(f"s_lshl_b32 s61, s{SW}, 2")
    a("s_add_u32 s60, s60, s61")
    a(f"s_add_u32 s60, s60, {WS_F1}")
    a("s_waitcnt vmcnt(0) lgkmcnt(0)")
    signal(a, "s60")
    stamp(a, 5)
    a("s_barrier")
    at_local(a)
    stamp(a, 6)
    def p1():
        poll(a, "dbg")
        a(f"s_lshl_b32 s60, s{sHD}, 8")
        a(f"s_add_u32 s60, s60, {WS_F1}")
        poll(a, "dw", "s60")
    only(0, p1)
    a(f"s_branch {latt}")
    a.label(lload)
    b1_loader_setup(a)
    for c in range(5): b1_issue(a, c)
    stamp(a, 2)
    l67, lj = a.newlabel("K_67"), a.newlabel("K_lj")
    a(f"s_cmp_ge_u32 s{SW}, 6")
    a(f"s_cbranch_scc1 {l67}")
    a1_dma(a)
    waits = [36, 29, 29, 29, 22, 7, 0]
    for c in range(7):
        a(f"s_waitcnt vmcnt({waits[c]})")
        a("s_barrier")
        if c in (1, 2): b1_issue(a, c + 4)
        if c < 5: a1_consts(a, c)
    stamp(a, 4)
    a1_compute(a)
    set_co(a, coB)
    a(f"s_branch {lj}")
    a.label(l67)
    waits = [28, 21, 21, 21, 22, 15, 8]
    for c in range(7):
        a(f"s_waitcnt vmcnt({waits[c]})")
        a("s_barrier")
        if c in (1, 2): b1_issue(a, c + 4)
        if c == 3: wt_dma(a)
        if c < 5: a3_consts(a, c)
        if c == 5: wt_addr(a)
    stamp(a, 4)
    a("s_waitcnt vmcnt(0)")
    wt_compute(a)
    set_co(a, coC)
    a.label(lj)
    a(f"v_lshlrev_b32 v{VL16}, 4, v0")
    a(f"s_lshl_b32 s64, s{sQT}, 11")
    a(f"s_add_u32 s64, s64, {Q_LDS}")
    a(f"v_add_u32 v2, s64, v{VL16}")
    stamp(a, 5)
    a("s_barrier")
    a(f"ds_read_b128 {vr(Qr,4)}, v2")
    a(f"ds_read_b128 {vr(Qr+4,4)}, v2 offset:1024")
    at_local(a)
    stamp(a, 6)
    a.label(latt)
    a("s_barrier")
    stamp(a, 7)
    at_main(a)
    stamp(a, 9)
    at_finish(a)
    slow, sret = a.newlabel("K_slow"), a.newlabel("K_sret")
    at_check(a, slow)
    a.label(sret)
    at_store(a)
    a(f"s_lshl_b32 s66, s{sRB}, 2")
    a(f"s_add_u32 s66, s66, s{sQT}")
    a("s_lshl_b32 s66, s66, 7")
    a(f"s_lshl_b32 s67, s{sHD}, 3")
    a("s_add_u32 s66, s66, s67")
    a(f"s_lshl_b32 s67, s{sKH}, 2")
    a("s_add_u32 s66, s66, s67")
    a(f"s_add_u32 s66, s66, {WS_F4}")
    a("s_waitcnt vmcnt(0)")
    signal(a, "s66")
    stamp(a, 10)
    l67b = a.newlabel("K_67b")
    a(f"s_cmp_ge_u32 s{SW}, 6")
    a(f"s_cbranch_scc1 {l67b}")
    b3_wfrags(a, 2)
    stamp(a, 11)
    a("s_barrier")
    b3_o_dma(a)
    a("s_waitcnt vmcnt(0)")
    a("s_barrier")
    stamp(a, 12)
    b3_mma(a, 2)
    stamp_flush(a)
    a("s_endpgm")
    a.label(l67b)
    b3_wfrags(a, 1)
    def p4():
        a(f"s_lshl_b32 s60, s{sQ32}, 7")
        a(f"s_add_u32 s60, s60, {WS_F4}")
        poll(a, "dw", "s60", nlanes=32)
    only(7, p4)
    stamp(a, 11)
    a("s_barrier")
    b3_o_dma(a)
    a("s_waitcnt vmcnt(0)")
    a("s_barrier")
    stamp(a, 12)
    b3_mma(a, 1)
    stamp_flush(a)
    a.label(end)
    a("s_endpgm")
    at_slow(a, slow, sret)
    def sig(w, base):
        def h(a_, vq):
            def f():
                a("s_lshl_b32 s60, s2, 2")
                a(f"s_add_u32 s60, s60, {base}")
                signal(a, "s60")
            only(w, f)
        return h
    def h_a2load(a_, vq):
        a(f"s_mov_b32 s60, {WS_F2}")
        poll(a, "x4", "s60"); vq.drain()
        a2_load(a); vq.issue("a2x", 4)
    def h_a2p1(a_, vq): a2_part1(a)
    def h_a2p2(a_, vq):
        a2_part2(a); vq.issue("z", 2)
    def h_a3load(a_, vq):
        a(f"s_mov_b32 s60, {WS_F3}")
        poll(a, "x4", "s60"); vq.drain()
        a3_load(a); vq.issue("z3", 8)
    def h_a3(a_, vq):
        vq.wait(a, ["z3"])
        a3_compute(a); vq.issue("o3", 4)
    def h_wo(a_, vq):
        b3_wo_dma(a, range(1, 14)); vq.issue("wo", 13)
    def h_wo0(a_, vq):
        b3_wo_dma(a, [0]); vq.issue("wo", 1)
    s0, sw, s3 = cfg.a2_stage, cfg.wo_stage, cfg.a3_stage
    assert sw >= s0 + 4 and s3 <= 12
    def H(*items):
        d = {}
        for st, fn in items + ((sw, h_wo), (13, h_wo0)): d.setdefault(st, []).append(fn)
        return d
    coroutine(a, coA, H((s0, h_a2load), (s0 + 2, h_a2p1), (s0 + 3, h_a2p2), (s0 + 5, sig(0, WS_F3))), {s0 + 2: ["a2x"], s0 + 5: ["z"]})
    coroutine(a, coN, H((1, sig(0, WS_F3))), {})
    coroutine(a, coB, H((1, sig(5, WS_F2))), {})
    coroutine(a, coC, H((s3, h_a3load), (13, h_a3)), {})
    a("s_endpgm")

def build(path):
    a = Asm()
    kernel(a)
    body = a.finalize(verbose=True)
    txt = f"; fused GFNet spectral filter + MHA block, persistent single launch (generated by dev/gen3.py)\n; @launch grid=(256,1,1) block=(512,1,1) lds=163840\n"
    txt += '.amdgcn_target "amdgcn-amd-amdhsa--gfx950"\n.text\n' + body + '\n.section .rodata,"a"\n.p2align 6\n'
    txt += f""".amdhsa_kernel {KN}
  .amdhsa_next_free_vgpr 256
  .amdhsa_next_free_sgpr 102
  .amdhsa_accum_offset 256
  .amdhsa_group_segment_fixed_size 0
  .amdhsa_kernarg_size 72
  .amdhsa_user_sgpr_count 2
  .amdhsa_user_sgpr_kernarg_segment_ptr 1
  .amdhsa_system_sgpr_workgroup_id_x 1
.end_amdhsa_kernel
"""
    open(path, "w").write(txt)

if __name__ == "__main__":
    build("kp.s")
    cfg.prof = True
    build("kpp.s")
```
